```python
import torch

def _softmax(x, axis=-1):
    return torch.softmax(x, dim=axis)
def _gelu(x):
    return torch.nn.functional.gelu(x, approximate="tanh")
def _silu(x):
    return torch.nn.functional.silu(x)
def _sigmoid(x):
    return torch.sigmoid(x)
def _layernorm(x, axis=-1, eps=1e-5):
    m = x.mean(dim=axis, keepdim=True)
    v = x.var(dim=axis, keepdim=True, unbiased=False)
    return (x - m) / torch.sqrt(v + eps)
def _scatter_add(tgt, idx, src, axis=0):
    return tgt.clone().index_add_(axis, idx, src)
def _segment_sum(src, seg, n):
    out = torch.zeros((n,) + src.shape[1:], dtype=src.dtype)
    return out.index_add_(0, seg, src)
def _pad(x, pw):
    flat = tuple(v for pair in reversed(pw) for v in pair)
    return torch.nn.functional.pad(x, flat)

kernel_name = 'parallel_sum__ssm_conv_s5__glu_gated_glu__prompt'

def setup_inputs():

    _w = (lambda a: (lambda t: t.to(torch.bfloat16) if t.is_floating_point() else t)(torch.as_tensor(a)))
    def _A_setup():
        B, S, D = 1, 2048, 1024
        P = D
        Lambda_re = -0.5 * (lambda _x: torch.exp(torch.as_tensor(_x)))((lambda *s: torch.randn(*s, dtype=torch.bfloat16) * 0.8)(P))
        Lambda_im = (lambda *s: torch.randn(*s, dtype=torch.bfloat16) * 0.8)(P) * 1.0
        B_re = (lambda *s: torch.randn(*s, dtype=torch.bfloat16) * 0.8)(P, D) * (D ** -0.5)
        B_im = (lambda *s: torch.randn(*s, dtype=torch.bfloat16) * 0.8)(P, D) * (D ** -0.5)
        C_re = (lambda *s: torch.randn(*s, dtype=torch.bfloat16) * 0.8)(D, P) * (P ** -0.5)
        C_im = (lambda *s: torch.randn(*s, dtype=torch.bfloat16) * 0.8)(D, P) * (P ** -0.5)
        log_dt = (lambda *s: torch.randn(*s, dtype=torch.bfloat16) * 0.8)(P) * 0.3 - 2.0
        Dskip = (lambda *s: torch.randn(*s, dtype=torch.bfloat16) * 0.8)(D)
        return {
            "x": _w((lambda *s: torch.randn(*s, dtype=torch.bfloat16) * 0.05)(B, S, D)),
            "Lambda_re": _w(Lambda_re),
            "Lambda_im": _w(Lambda_im),
            "B_re": _w(B_re),
            "B_im": _w(B_im),
            "C_re": _w(C_re),
            "C_im": _w(C_im),
            "log_dt": _w(log_dt),
            "Dskip": _w(Dskip),
        }
    _A_in = _A_setup()

    def _B_setup():
        B, S, D, F = 1, 2048, 1024, 3584
        return {
            "x": _w((lambda *s: torch.randn(*s, dtype=torch.bfloat16) * 0.05)(B, S, D)),
            "w_gate": _w((lambda *s: torch.randn(*s, dtype=torch.bfloat16) * 0.05)(D, F)),
            "w_up": _w((lambda *s: torch.randn(*s, dtype=torch.bfloat16) * 0.05)(D, F)),
            "w_down": _w((lambda *s: torch.randn(*s, dtype=torch.bfloat16) * 0.05)(F, D)),
        }
    _B_in = _B_setup()

    return {
        "A_x": _A_in["x"],
        "A_Lambda_re": _A_in["Lambda_re"],
        "A_Lambda_im": _A_in["Lambda_im"],
        "A_B_re": _A_in["B_re"],
        "A_B_im": _A_in["B_im"],
        "A_C_re": _A_in["C_re"],
        "A_C_im": _A_in["C_im"],
        "A_log_dt": _A_in["log_dt"],
        "A_Dskip": _A_in["Dskip"],
        "B_x": _B_in["x"],
        "B_w_gate": _B_in["w_gate"],
        "B_w_up": _B_in["w_up"],
        "B_w_down": _B_in["w_down"],
    }

def reference(A_x, A_Lambda_re, A_Lambda_im, A_B_re, A_B_im, A_C_re, A_C_im, A_log_dt, A_Dskip, B_x, B_w_gate, B_w_up, B_w_down):
    def _A_ref(x, Lambda_re, Lambda_im, B_re, B_im, C_re, C_im, log_dt, Dskip):
        Bsz, L, H = x.shape
        Lam = Lambda_re + 1j * Lambda_im
        Bmat = B_re + 1j * B_im
        Cmat = C_re + 1j * C_im
        dt = torch.exp(log_dt)
        Lam_bar = torch.exp(dt * Lam)
        B_bar = ((Lam_bar - 1.0) / Lam)[:, None] * Bmat
        Bu = torch.einsum("bld,pd->blp", x + 0j, B_bar)
        h = torch.zeros_like(Bu[:, 0, :])
        hs = []
        for t in range(L):
            h = Lam_bar[None, :] * h + Bu[:, t, :]
            hs.append(h)
        hseq = torch.stack(hs, 1)
        y = 2.0 * torch.einsum("blp,dp->bld", hseq, Cmat).real + x * Dskip[None, None, :]
        return y

    def _B_ref(x, w_gate, w_up, w_down):
        g = torch.einsum("bsd,df->bsf", x, w_gate)
        u = torch.einsum("bsd,df->bsf", x, w_up)
        h = _sigmoid(g) * u
        return torch.einsum("bsf,fd->bsd", h, w_down)

    x = A_x
    xn = _layernorm(x, axis=-1)
    return x + _A_ref(xn, A_Lambda_re, A_Lambda_im, A_B_re, A_B_im, A_C_re, A_C_im, A_log_dt, A_Dskip) + _B_ref(xn, B_w_gate, B_w_up, B_w_down)
```

```python
import sys
sys.path.insert(0, "gen")
from asmlib import *
from k1 import XN_OFF, EXC_OFF, CT_OFF
FLAG_OFF = EXC_OFF + 0x10000
import struct
def f2u(x): return struct.unpack("<I", struct.pack("<f", x))[0]

def wave_sum(a, v, t, s):
    for ctl in ["quad_perm:[1,0,3,2]", "quad_perm:[2,3,0,1]", "row_half_mirror", "row_mirror"]:
        a("s_nop 1")
        a(f"v_add_f32_dpp v{v}, v{v}, v{v} {ctl} row_mask:0xf bank_mask:0xf")
    a("s_nop 1")
    for i in range(4): a(f"v_readlane_b32 s{s+i}, v{v}, {16*i}")
    a("s_nop 1")
    a(f"v_mov_b32 v{t}, s{s}")
    a(f"v_add_f32 v{t}, s{s+1}, v{t}")
    a(f"v_mov_b32 v{v}, s{s+2}")
    a(f"v_add_f32 v{v}, s{s+3}, v{v}")
    a(f"v_add_f32 v{v}, v{t}, v{v}")

def k0_body(a, name):
    kernel_begin(a, name)
    a("s_cmp_ge_u32 s2, 640")
    a("s_cbranch_scc1 L_k0_end")
    a("s_cmp_ge_u32 s2, 512")
    a("s_cbranch_scc1 L_k0_tr")
    a("s_load_dwordx2 s[4:5], s[0:1], 0")
    a("s_load_dwordx2 s[6:7], s[0:1], 120")
    a("v_lshrrev_b32 v1, 6, v0")
    a("v_and_b32 v2, 63, v0")
    a("s_lshl_b32 s3, s2, 2")
    a("v_add_u32 v1, s3, v1")
    a("v_lshlrev_b32 v3, 11, v1")
    a("v_lshl_add_u32 v3, v2, 5, v3")
    a("s_waitcnt lgkmcnt(0)")
    a("global_load_dwordx4 v[8:11], v3, s[4:5]")
    a("global_load_dwordx4 v[12:15], v3, s[4:5] offset:16")
    a("s_mov_b32 s8, s6"); a("s_and_b32 s9, s7, 0xffff"); a("s_mov_b32 s10, 0x10000000"); a("s_mov_b32 s11, 0x20000")
    a("s_cmp_lg_u32 s2, 0")
    a("s_cbranch_scc1 L_k0_nf")
    a("v_lshlrev_b32 v4, 2, v0")
    a("v_mov_b32 v5, 0")
    a(f"s_mov_b32 s12, {FLAG_OFF}")
    a("buffer_store_dword v5, v4, s[8:11], s12 offen")
    a.label("L_k0_nf")
    a("v_lshlrev_b32 v4, 16, v2")
    a("v_lshl_add_u32 v4, v1, 5, v4")
    a(f"v_add_u32 v4, {XN_OFF}, v4")
    a("s_waitcnt vmcnt(0)")
    for i in range(8):
        a(f"v_lshlrev_b32 v{16+2*i}, 16, v{8+i}")
        a(f"v_and_b32 v{17+2*i}, 0xffff0000, v{8+i}")
    a("v_add_f32 v32, v16, v17")
    for i in range(2, 16): a(f"v_add_f32 v32, v32, v{16+i}")
    wave_sum(a, 32, 33, 16)
    a(f"v_mul_f32 v32, {f2u(1.0/1024)}, v32")
    a("v_sub_f32 v34, v16, v32")
    a("v_mul_f32 v35, v34, v34")
    for i in range(1, 16):
        a(f"v_sub_f32 v34, v{16+i}, v32")
        a("v_fma_f32 v35, v34, v34, v35")
    wave_sum(a, 35, 33, 16)
    a(f"v_mul_f32 v35, {f2u(1.0/1024)}, v35")
    a("v_cvt_pk_bf16_f32 v35, v35, v35")
    a("v_lshlrev_b32 v35, 16, v35")
    a(f"v_add_f32 v35, {f2u(1e-5)}, v35")
    a("v_cvt_pk_bf16_f32 v35, v35, v35")
    a("v_lshlrev_b32 v35, 16, v35")
    a("v_sqrt_f32 v35, v35")
    a("v_cvt_pk_bf16_f32 v32, v32, v32")
    a("v_lshlrev_b32 v32, 16, v32")
    a("v_cvt_pk_bf16_f32 v35, v35, v35")
    a("v_lshlrev_b32 v35, 16, v35")
    a("v_rcp_f32 v36, v35")
    a("s_nop 0")
    a("v_fma_f32 v37, -v35, v36, 1.0")
    a("v_fma_f32 v36, v37, v36, v36")
    for i in range(8):
        x0, x1 = 16+2*i, 17+2*i
        a(f"v_sub_f32 v{x0}, v{x0}, v32")
        a(f"v_sub_f32 v{x1}, v{x1}, v32")
        a(f"v_cvt_pk_bf16_f32 v38, v{x0}, v{x1}")
        a(f"v_lshlrev_b32 v{x0}, 16, v38")
        a(f"v_and_b32 v{x1}, 0xffff0000, v38")
        a(f"v_mul_f32 v39, v{x0}, v36")
        a(f"v_mul_f32 v40, v{x1}, v36")
        a(f"v_fma_f32 v41, -v39, v35, v{x0}")
        a(f"v_fma_f32 v42, -v40, v35, v{x1}")
        a(f"v_fma_f32 v39, v41, v36, v39")
        a(f"v_fma_f32 v40, v42, v36, v40")
        a(f"v_cvt_pk_bf16_f32 v{8+i}, v39, v40")
    a("buffer_store_dwordx4 v[8:11], v4, s[8:11], 0 offen")
    a("buffer_store_dwordx4 v[12:15], v4, s[8:11], 0 offen offset:16")
    a("s_endpgm")
    a.label("L_k0_tr")
    a("s_load_dwordx4 s[4:7], s[0:1], 40")
    a("s_load_dwordx2 s[20:21], s[0:1], 120")
    a("v_lshrrev_b32 v1, 6, v0")
    a("v_and_b32 v2, 63, v0")
    a("s_nop 0")
    a("v_readfirstlane_b32 s3, v1")
    a("s_sub_u32 s12, s2, 512")
    a("s_lshl_b32 s12, s12, 2")
    a("s_add_u32 s12, s12, s3")
    a("s_lshr_b32 s13, s12, 8")
    a("s_bfe_u32 s14, s12, 0x40004")
    a("s_and_b32 s15, s12, 15")
    a("v_lshrrev_b32 v3, 3, v2")
    a("v_lshlrev_b32 v3, 11, v3")
    a("v_and_b32 v4, 7, v2")
    a("v_lshl_add_u32 v3, v4, 4, v3")
    a("s_waitcnt lgkmcnt(0)")
    a("s_cmp_eq_u32 s13, 0")
    a("s_cselect_b32 s8, s4, s6")
    a("s_cselect_b32 s16, s5, s7")
    a("s_and_b32 s9, s16, 0xffff"); a("s_mov_b32 s10, 0x200000"); a("s_mov_b32 s11, 0x20000")
    a("s_mov_b32 s24, s20"); a("s_and_b32 s25, s21, 0xffff"); a("s_mov_b32 s26, 0x10000000"); a("s_mov_b32 s27, 0x20000")
    a("s_lshl_b32 s16, s14, 17")
    a("s_lshl_b32 s17, s15, 7")
    a("s_add_u32 s16, s16, s17")
    a("s_lshl_b32 s18, s3, 13")
    for i in range(8):
        a(f"s_add_u32 m0, s18, {i*1024}")
        a(f"s_add_u32 s17, s16, {i*8*2048}")
        a("buffer_load_dwordx4 v3, s[8:11], s17 offen lds")
    a("v_lshrrev_b32 v5, 4, v2")
    a("v_bfe_u32 v6, v2, 2, 2")
    a("v_lshl_add_u32 v6, v5, 3, v6")
    a("v_lshlrev_b32 v6, 7, v6")
    a("v_and_b32 v7, 3, v2")
    a("v_lshl_add_u32 v6, v7, 3, v6")
    a("v_add_u32 v6, s18, v6")
    a("v_and_b32 v7, 15, v2")
    a("v_lshlrev_b32 v7, 11, v7")
    a("v_lshl_add_u32 v7, v5, 4, v7")
    a("s_lshl_b32 s16, s13, 21")
    a("s_lshl_b32 s17, s15, 17")
    a("s_add_u32 s16, s16, s17")
    a("s_lshl_b32 s17, s14, 7")
    a("s_add_u32 s16, s16, s17")
    a(f"s_add_u32 s16, s16, {CT_OFF}")
    a("s_waitcnt vmcnt(0)")
    k = 0
    for pb in range(4):
        for dh in range(2):
            b = 8 + 4*k
            a(f"ds_read_b64_tr_b16 v[{b}:{b+1}], v6 offset:{dh*32*128 + pb*32}")
            a(f"ds_read_b64_tr_b16 v[{b+2}:{b+3}], v6 offset:{dh*32*128 + 4*128 + pb*32}")
            k += 1
    a("s_waitcnt lgkmcnt(0)")
    k = 0
    for pb in range(4):
        for dh in range(2):
            b = 8 + 4*k
            a(f"s_add_u32 s17, s16, {pb*16*2048}")
            a(f"buffer_store_dwordx4 v[{b}:{b+3}], v7, s[24:27], s17 offen offset:{dh*64}")
            k += 1
    a.label("L_k0_end")
    a("s_endpgm")

if __name__ == "__main__":
    a = Asm()
    name = "k0_kernel"
    a.raw(f"; @launch kernel={name} grid=(640,1,1) block=(256,1,1) lds=32768")
    a.raw('.amdgcn_target "amdgcn-amd-amdhsa--gfx950"')
    k0_body(a, name)
    a.raw(kernel_desc(name, 64, accum=64))
    open("k0.s", "w").write(a.text())
    build("k0.s", name)
    print("ok")
```

```python
import sys
sys.path.insert(0, "gen")
from asmlib import *

XN_OFF   = 0x0010_0000
CT_OFF   = 0x0060_0000
HT_OFF   = 0x0100_0000
EXC_OFF  = 0x0280_0000
DBG_OFF  = 0x0400_0000

SET = [32, 120]
def rX(p, fm): return SET[p] + 4*fm
def rW(p, u, n): return SET[p] + 16 + (u*7 + n)*4
def rB(p, j): return SET[p] + 72 + 4*j
def vr(b, n=4): return f"v[{b}:{b+n-1}]"
def accG(u, n, fm):
    b = ((u*7 + n)*4 + fm)*4
    return f"a[{b}:{b+3}]"
def accS_idx(fm, j):
    if fm < 2: return ('a', 224 + (fm*4 + j)*4)
    return ('v', 208 + ((fm-2)*4 + j)*4)
def accS(fm, j):
    t, b = accS_idx(fm, j)
    return f"{t}[{b}:{b+3}]"

V_XO = [1, 2, 3, 4]
V_WO = [5, 6]
V_BO = 7
V_AX = 8
V_AB = 9
V_AW = [10, 11, 12, 13, 14, 15, 16]
S_WS, S_WG, S_WU, S_B = 8, 12, 16, 20
S_SX, S_SW, S_SB = 24, 25, 26
S_MX, S_MW, S_MB = 27, 28, 29
S_CNT = 30
S_W, S_MT, S_NT = 31, 32, 33

def dma_group(a_list, buf, opt):
    g = []
    for i in range(4):
        l = []
        if i == 0:
            l.append(f"s_add_u32 m0, s{S_MX}, {buf*16384}")
            l.append("s_nop 0")
        l.append(f"buffer_load_dwordx4 v{V_XO[i]}, s[{S_WS}:{S_WS+3}], s{S_SX} offen offset:{1024*i} lds")
        g.append(l)
    for u in range(2):
        srd = S_WU if u else S_WG
        for i in range(2):
            l = []
            if i == 0:
                l.append(f"s_add_u32 m0, s{S_MW}, {buf*16384 + u*8192}")
                l.append("s_nop 0")
            l.append(f"buffer_load_dwordx4 v{V_WO[i]}, s[{srd}:{srd+3}], s{S_SW} offen offset:{1024*i} lds")
            g.append(l)
    l = [f"s_add_u32 m0, s{S_MB}, {buf*4096}", "s_nop 0",
         f"buffer_load_dwordx4 v{V_BO}, s[{S_B}:{S_B+3}], s{S_SB} offen lds",
         f"s_add_u32 s{S_SX}, s{S_SX}, 131072",
         f"s_add_u32 s{S_SW}, s{S_SW}, {32*7168}",
         f"s_add_u32 s{S_SB}, s{S_SB}, 64"]
    g.append(l)
    return g

def frag_reads(p, buf):
    r = []
    for fm in range(4):
        r.append(f"ds_read_b128 {vr(rX(p,fm))}, v{V_AX} offset:{buf*16384 + fm*512}")
    for n in range(7):
        for u in range(2):
            for h in range(2):
                b = rW(p,u,n) + 2*h
                r.append(f"ds_read_b64_tr_b16 v[{b}:{b+1}], v{V_AW[n]} offset:{buf*16384 + u*8192 + h*1024}")
    for j in range(4):
        r.append(f"ds_read_b128 {vr(rB(p,j))}, v{V_AB} offset:{buf*4096 + j*1024}")
    return r

def mfmas(p):
    m = []
    for n in range(7):
        for u in range(2):
            for fm in range(4):
                d = accG(u,n,fm)
                m.append(f"v_mfma_f32_16x16x32_bf16 {d}, {vr(rX(p,fm))}, {vr(rW(p,u,n))}, {d}")
    for j in range(4):
        for fm in range(4):
            d = accS(fm,j)
            m.append(f"v_mfma_f32_16x16x32_bf16 {d}, {vr(rX(p,fm))}, {vr(rB(p,j))}, {d}")
    return m

def step(a, s4, dma, reads, vm, opt, barrier=True):
    p = s4 & 1
    w = []
    if vm is not None: w.append(f"vmcnt({vm})")
    w.append("lgkmcnt(0)")
    a("s_waitcnt " + " ".join(w))
    if barrier and not opt.get("nobar"): a("s_barrier")
    M = mfmas(p)
    fill = [[] for _ in range(len(M))]
    if reads and not opt.get("noread"):
        R = frag_reads(1-p, (s4+1) & 3)
        span = opt.get("rspan", 56)
        for i, r in enumerate(R):
            fill[(i*span)//len(R)].append(r)
    if dma and not opt.get("nodma"):
        G = dma_group(None, s4, opt)
        d0 = opt.get("dma0", 2); dsp = opt.get("dsp", 7)
        for i, g in enumerate(G):
            fill[d0 + i*dsp].extend(g)
    for i, m in enumerate(M):
        a(m)
        for f in fill[i]: a(f)

def setup(a, name):
    a("s_cmp_ge_u32 s2, 256")
    a("s_cbranch_scc1 L_k1_end")
    a("s_load_dwordx4 s[40:43], s[0:1], 24")
    a("s_load_dwordx4 s[44:47], s[0:1], 80")
    a("s_load_dwordx2 s[48:49], s[0:1], 120")
    a("v_lshrrev_b32 v20, 6, v0")
    a("v_and_b32 v21, 63, v0")
    a("s_and_b32 s34, s2, 7")
    a("s_lshr_b32 s35, s2, 3")
    a(f"v_readfirstlane_b32 s{S_W}, v20")
    a(f"s_and_b32 s{S_MT}, s35, 7")
    a("s_lshr_b32 s35, s35, 3")
    a("s_lshl_b32 s34, s34, 2")
    a(f"s_add_u32 s{S_NT}, s34, s35")
    a("v_bfe_u32 v22, v21, 3, 2")
    a("v_lshlrev_b32 v22, 4, v22")
    a("v_lshrrev_b32 v23, 5, v21")
    a("v_lshl_add_u32 v22, v23, 2, v22")
    a("v_bfe_u32 v23, v21, 1, 2")
    a("v_add_u32 v22, v22, v23")
    a("v_lshlrev_b32 v22, 5, v22")
    a("v_and_b32 v23, 1, v21")
    a("v_lshl_add_u32 v22, v23, 4, v22")
    a(f"s_lshl_b32 s34, s{S_MT}, 13")
    a(f"s_lshl_b32 s35, s{S_W}, 11")
    a("s_add_u32 s34, s34, s35")
    a(f"s_add_u32 s34, s34, {XN_OFF}")
    a(f"v_add_u32 v{V_XO[0]}, s34, v22")
    a(f"v_add_u32 v{V_XO[1]}, {(256-1024) & 0xffffffff}, v{V_XO[0]}")
    a(f"v_add_u32 v{V_XO[2]}, {65536-2048}, v{V_XO[0]}")
    a(f"v_add_u32 v{V_XO[3]}, {65536+256-3072}, v{V_XO[0]}")
    a("v_lshrrev_b32 v22, 4, v21")
    a(f"s_and_b32 s34, s{S_W}, 1")
    a("s_lshl_b32 s34, s34, 2")
    a("v_add_u32 v23, s34, v22")
    a("v_bfe_u32 v24, v21, 1, 3")
    a("v_xor_b32 v24, v24, v23")
    a(f"s_lshl_b32 s34, s{S_W}, 3")
    a("v_add_u32 v22, s34, v22")
    a("s_movk_i32 s35, 7168")
    a("v_mul_lo_u32 v22, v22, s35")
    a("v_lshl_add_u32 v22, v24, 5, v22")
    a("v_and_b32 v25, 1, v21")
    a("v_lshl_add_u32 v22, v25, 4, v22")
    a(f"s_mul_i32 s34, s{S_NT}, 224")
    a("v_add_u32 v22, s34, v22")
    a("v_cmp_eq_u32 vcc, 7, v24")
    a("v_mov_b32 v25, 0x40000000")
    a("s_nop 1")
    a(f"v_cndmask_b32 v{V_WO[0]}, v22, v25, vcc")
    a(f"v_add_u32 v{V_WO[1]}, {4*7168-1024}, v{V_WO[0]}")
    a("v_lshrrev_b32 v22, 2, v21")
    a("v_lshrrev_b32 v23, 5, v21")
    a("v_mul_u32_u24 v23, 3, v23")
    a("v_and_b32 v24, 3, v21")
    a("v_xor_b32 v23, v23, v24")
    a(f"s_lshl_b32 s34, s{S_NT}, 5")
    a(f"s_and_b32 s35, s{S_W}, 1")
    a("s_lshl_b32 s35, s35, 4")
    a("s_add_u32 s34, s34, s35")
    a("v_add_u32 v22, s34, v22")
    a("v_lshlrev_b32 v22, 11, v22")
    a(f"v_lshl_add_u32 v{V_BO}, v23, 4, v22")
    a("v_and_b32 v22, 15, v21")
    a("v_lshrrev_b32 v23, 4, v21")
    a("v_lshrrev_b32 v24, 1, v23")
    a("v_lshlrev_b32 v24, 11, v24")
    a("v_lshl_add_u32 v24, v22, 5, v24")
    a("v_and_b32 v25, 1, v23")
    a("v_lshl_add_u32 v24, v25, 4, v24")
    a(f"s_lshl_b32 s34, s{S_W}, 12")
    a(f"s_add_u32 s{S_MX}, s34, 65536")
    a(f"v_add_u32 v{V_AX}, s{S_MX}, v24")
    a("v_lshrrev_b32 v24, 3, v22")
    a("v_mul_u32_u24 v24, 3, v24")
    a("v_xor_b32 v24, v24, v23")
    a("v_lshlrev_b32 v24, 4, v24")
    a("v_lshl_add_u32 v24, v22, 6, v24")
    a(f"v_add_u32 v{V_AB}, 131072, v24")
    a("v_lshrrev_b32 v24, 2, v22")
    a("v_lshl_add_u32 v26, v23, 3, v24")
    a("v_lshlrev_b32 v26, 8, v26")
    a("v_and_b32 v27, 3, v21")
    a("v_lshl_add_u32 v26, v27, 3, v26")
    a("v_lshl_add_u32 v24, v25, 2, v24")
    for n in range(7):
        a(f"v_xor_b32 v27, {n}, v24")
        a(f"v_lshl_add_u32 v{V_AW[n]}, v27, 5, v26")
    a(f"s_lshl_b32 s{S_MW}, s{S_W}, 11")
    a(f"s_lshl_b32 s34, s{S_W}, 10")
    a(f"s_add_u32 s{S_MB}, s34, 131072")
    a(f"s_mov_b32 s{S_SX}, 0")
    a(f"s_mov_b32 s{S_SW}, 0")
    a(f"s_mov_b32 s{S_SB}, 0")
    a("s_waitcnt lgkmcnt(0)")
    a(f"s_mov_b32 s{S_WS}, s48"); a(f"s_and_b32 s{S_WS+1}, s49, 0xffff"); a(f"s_mov_b32 s{S_WS+2}, 0x10000000"); a(f"s_mov_b32 s{S_WS+3}, 0x20000")
    a(f"s_mov_b32 s{S_WG}, s44"); a(f"s_and_b32 s{S_WG+1}, s45, 0xffff"); a(f"s_mov_b32 s{S_WG+2}, {1024*7168}"); a(f"s_mov_b32 s{S_WG+3}, 0x20000")
    a(f"s_mov_b32 s{S_WU}, s46"); a(f"s_and_b32 s{S_WU+1}, s47, 0xffff"); a(f"s_mov_b32 s{S_WU+2}, {1024*7168}"); a(f"s_mov_b32 s{S_WU+3}, 0x20000")
    a(f"s_cmp_lt_u32 s{S_W}, 2")
    a(f"s_cselect_b32 s{S_B}, s40, s42")
    a("s_cselect_b32 s34, s41, s43")
    a(f"s_and_b32 s{S_B+1}, s34, 0xffff"); a(f"s_mov_b32 s{S_B+2}, {1024*2048}"); a(f"s_mov_b32 s{S_B+3}, 0x20000")

def mainloop(a, opt):
    for s in range(4):
        for g in dma_group(None, s, opt):
            for l in g: a(l)
    for i in range(256): a(f"v_accvgpr_write_b32 a{i}, 0")
    for i in range(208, 240): a(f"v_mov_b32 v{i}, 0")
    a("s_waitcnt vmcnt(27)")
    a("s_barrier")
    for r in frag_reads(0, 0): a(r)
    if opt.get("timing"):
        a("s_memtime s[60:61]")
        a("s_memrealtime s[64:65]")
    a(f"s_mov_b32 s{S_CNT}, 7")
    a.label("L_k1_loop")
    for s4 in range(4):
        step(a, s4, True, True, 18, opt)
    a(f"s_sub_u32 s{S_CNT}, s{S_CNT}, 1")
    a(f"s_cmp_lg_u32 s{S_CNT}, 0")
    a("s_cbranch_scc1 L_k1_loop")
    step(a, 0, False, True, 18, opt)
    step(a, 1, False, True, 9, opt)
    step(a, 2, False, True, 0, opt)
    step(a, 3, False, False, None, opt, barrier=False)

def dump_acc(a):
    a("s_nop 7"); a("s_nop 7")
    a("v_and_b32 v21, 63, v0")
    a(f"s_lshl_b32 s34, s2, 2")
    a(f"s_add_u32 s34, s34, s{S_W}")
    a(f"s_mul_i32 s34, s34, {288*256}")
    a(f"s_add_u32 s34, s34, {DBG_OFF}")
    a("v_lshlrev_b32 v21, 2, v21")
    for i in range(256):
        a(f"v_accvgpr_read_b32 v22, a{i}")
        a(f"s_add_u32 s35, s34, {i*256}")
        a(f"buffer_store_dword v22, v21, s[{S_WS}:{S_WS+3}], s35 offen")
        a("s_nop 1")
    for i in range(32):
        a(f"s_add_u32 s35, s34, {(256+i)*256}")
        a(f"buffer_store_dword v{208+i}, v21, s[{S_WS}:{S_WS+3}], s35 offen")

def timing_out(a):
    a("s_memtime s[62:63]")
    a("s_memrealtime s[66:67]")
    a("s_load_dwordx2 s[50:51], s[0:1], 104")
    a("s_waitcnt lgkmcnt(0)")
    a("s_sub_u32 s62, s62, s60")
    a("s_sub_u32 s66, s66, s64")
    a("v_mov_b32 v22, s62")
    a("v_mov_b32 v23, s66")
    a("v_mov_b32 v24, s64")
    a("v_mov_b32 v25, s65")
    a("s_lshl_b32 s34, s2, 4")
    a("v_mov_b32 v26, s34")
    a("v_cmp_eq_u32 vcc, 0, v0")
    a("s_and_saveexec_b64 s[54:55], vcc")
    a("s_cbranch_execz L_k1_end")
    a("global_store_dwordx4 v26, v[22:25], s[50:51]")

def gen_test(name, opt):
    a = Asm()
    a.raw(f"; @launch kernel={name} grid=(256,1,1) block=(256,1,1) lds=147456")
    a.raw('.amdgcn_target "amdgcn-amd-amdhsa--gfx950"')
    kernel_begin(a, name)
    setup(a, name)
    mainloop(a, opt)
    if opt.get("dump"): dump_acc(a)
    if opt.get("timing"): timing_out(a)
    a.label("L_k1_end")
    a("s_endpgm")
    a.raw(kernel_desc(name, 512, accum=256))
    return a.text()

if __name__ == "__main__":
    import json
    variants = {
        "k1_dump": dict(dump=True),
        "k1_t": dict(timing=True),
        "k1_t_nodma": dict(timing=True, nodma=True),
        "k1_t_noread": dict(timing=True, noread=True),
        "k1_t_nobar": dict(timing=True, nobar=True),
        "k1_t_mfma": dict(timing=True, nodma=True, noread=True, nobar=True),
    }
    for k, o in variants.items():
        open(f"bench/{k}.s", "w").write(gen_test(k + "_kernel", o))
        build(f"bench/{k}.s", k + "_kernel")
    print("ok")
```

```python
import sys
sys.path.insert(0, "gen")
from asmlib import *
from k1 import *

PA   = [240, 242]
P16  = [244, 246]
PQ   = [248, 250]
P256 = [252, 254]
PC   = [17, 19]
LOG2E = 1.4426950408889634
FLAG_OFF = EXC_OFF + 0x10000

def f2u(x):
    import struct
    return struct.unpack("<I", struct.pack("<f", x))[0]

def cmul(a, dr, di, ar, ai, br, bi, t):
    a(f"v_mul_f32 v{t}, v{ar}, v{br}")
    a(f"v_mul_f32 v{t+1}, v{ar}, v{bi}")
    a(f"v_fma_f32 v{t}, -v{ai}, v{bi}, v{t}")
    a(f"v_fma_f32 v{t+1}, v{ai}, v{br}, v{t+1}")
    a(f"v_mov_b32 v{dr}, v{t}")
    a(f"v_mov_b32 v{di}, v{t+1}")

def param_loads(a):
    a("s_load_dwordx4 s[52:55], s[0:1], 8")
    a("s_load_dwordx2 s[56:57], s[0:1], 56")
    a("v_and_b32 v22, 15, v0")
    a(f"s_lshl_b32 s34, s{S_NT}, 5")
    a("v_add_u32 v22, s34, v22")
    a("v_lshlrev_b32 v22, 1, v22")
    a("s_waitcnt lgkmcnt(0)")
    for jj in range(2):
        a(f"global_load_ushort v{32+3*jj}, v22, s[52:53] offset:{32*jj}")
        a(f"global_load_ushort v{33+3*jj}, v22, s[54:55] offset:{32*jj}")
        a(f"global_load_ushort v{34+3*jj}, v22, s[56:57] offset:{32*jj}")

def param_compute(a):
    T = 60
    a("v_bfe_u32 v58, v0, 4, 2")
    for jj in range(2):
        lre, lim, ld = 32+3*jj, 33+3*jj, 34+3*jj
        for r in (lre, lim, ld): a(f"v_lshlrev_b32 v{r}, 16, v{r}")
        a(f"v_mul_f32 v40, {f2u(LOG2E)}, v{ld}")
        a("v_exp_f32 v40, v40")
        a("s_nop 0")
        a("v_cvt_pk_bf16_f32 v40, v40, v40")
        a("v_lshlrev_b32 v40, 16, v40")
        a(f"v_mul_f32 v41, v40, v{lre}")
        a(f"v_mul_f32 v42, v40, v{lim}")
        a(f"v_mul_f32 v41, {f2u(LOG2E)}, v41")
        a("v_exp_f32 v41, v41")
        a(f"v_mul_f32 v42, {f2u(0.15915494309189535)}, v42")
        a("v_cos_f32 v43, v42")
        a("v_sin_f32 v44, v42")
        a("s_nop 0")
        ar, ai = PA[jj], PA[jj]+1
        a(f"v_mul_f32 v{ar}, v41, v43")
        a(f"v_mul_f32 v{ai}, v41, v44")
        a(f"v_add_f32 v45, -1.0, v{ar}")
        a(f"v_mul_f32 v46, v{lre}, v{lre}")
        a(f"v_fma_f32 v46, v{lim}, v{lim}, v46")
        a("v_rcp_f32 v46, v46")
        a(f"v_mul_f32 v47, v45, v{lre}")
        a(f"v_fma_f32 v47, v{ai}, v{lim}, v47")
        a(f"v_mul_f32 v48, v{ai}, v{lre}")
        a(f"v_fma_f32 v48, -v45, v{lim}, v48")
        a("v_add_f32 v46, v46, v46")
        a(f"v_mul_f32 v{PC[jj]}, v47, v46")
        a(f"v_mul_f32 v{PC[jj]+1}, v48, v46")
        a(f"v_mov_b32 v50, v{ar}"); a(f"v_mov_b32 v51, v{ai}")
        for k in range(4): cmul(a, 50, 51, 50, 51, 50, 51, T)
        a(f"v_mov_b32 v{P16[jj]}, v50"); a(f"v_mov_b32 v{P16[jj]+1}, v51")
        a(f"v_mov_b32 v{PQ[jj]}, 1.0"); a(f"v_mov_b32 v{PQ[jj]+1}, 0")
        for bit in range(4):
            if bit < 2:
                a(f"v_and_b32 v59, {1<<bit}, v58")
                a("v_cmp_ne_u32 vcc, 0, v59")
            else:
                a(f"s_bitcmp1_b32 s{S_W}, {bit-2}")
                a("s_cselect_b64 vcc, -1, 0")
            a("s_nop 1")
            a("v_cndmask_b32 v52, 1.0, v50, vcc")
            a("v_cndmask_b32 v53, 0, v51, vcc")
            cmul(a, PQ[jj], PQ[jj]+1, PQ[jj], PQ[jj]+1, 52, 53, T)
            cmul(a, 50, 51, 50, 51, 50, 51, T)
        a(f"v_mov_b32 v{P256[jj]}, v50"); a(f"v_mov_b32 v{P256[jj]+1}, v51")

def S(j, tau):
    fm, r = tau >> 2, tau & 3
    if fm < 2: return 32 + (fm*4 + j)*4 + r
    return 208 + ((fm-2)*4 + j)*4 + r

def ssm_pass1(a):
    for i in range(32): a(f"v_accvgpr_read_b32 v{32+i}, a{224+i}")
    E = [64, 66]; Tm = [68, 70]
    for jj in range(2):
        a(f"v_mov_b32 v{E[jj]}, v{S(jj,0)}"); a(f"v_mov_b32 v{E[jj]+1}, v{S(2+jj,0)}")
    for tau in range(1, 16):
        for jj in range(2):
            a(f"v_fma_f32 v{Tm[jj]}, v{PA[jj]}, v{E[jj]}, v{S(jj,tau)}")
            a(f"v_fma_f32 v{Tm[jj]+1}, v{PA[jj]}, v{E[jj]+1}, v{S(2+jj,tau)}")
        for jj in range(2):
            a(f"v_fma_f32 v{Tm[jj]}, -v{PA[jj]+1}, v{E[jj]+1}, v{Tm[jj]}")
            a(f"v_fma_f32 v{E[jj]+1}, v{PA[jj]+1}, v{E[jj]}, v{Tm[jj]+1}")
            a(f"v_mov_b32 v{E[jj]}, v{Tm[jj]}")
    a("v_lshlrev_b32 v72, 4, v0")
    a("ds_write_b128 v72, v[64:67]")
    a("s_waitcnt lgkmcnt(0)")
    a("s_barrier")
    a("v_and_b32 v72, 15, v0")
    a("v_lshlrev_b32 v72, 4, v72")
    for sp in range(15):
        a(f"ds_read_b128 v[{80+4*sp}:{83+4*sp}], v72 offset:{256*sp}")
    a("v_lshrrev_b32 v73, 4, v0")
    for i in range(4): a(f"v_mov_b32 v{74+i}, 0")
    a("s_mov_b64 s[36:37], exec")
    a("s_waitcnt lgkmcnt(0)")
    for sp in range(15):
        a(f"v_cmpx_lt_u32 vcc, {sp}, v73")
        e = 80 + 4*sp
        for jj in range(2):
            a(f"v_fma_f32 v{Tm[jj]}, v{P16[jj]}, v{74+2*jj}, v{e+2*jj}")
            a(f"v_fma_f32 v{Tm[jj]+1}, v{P16[jj]}, v{75+2*jj}, v{e+2*jj+1}")
        for jj in range(2):
            a(f"v_fma_f32 v{Tm[jj]}, -v{P16[jj]+1}, v{75+2*jj}, v{Tm[jj]}")
            a(f"v_fma_f32 v{75+2*jj}, v{P16[jj]+1}, v{74+2*jj}, v{Tm[jj]+1}")
            a(f"v_mov_b32 v{74+2*jj}, v{Tm[jj]}")
    a("s_mov_b64 exec, s[36:37]")
    for jj in range(2):
        a(f"v_fma_f32 v{78}, v{P16[jj]}, v{74+2*jj}, v{E[jj]}")
        a(f"v_fma_f32 v{79}, v{P16[jj]}, v{75+2*jj}, v{E[jj]+1}")
        a(f"v_fma_f32 v{Tm[jj]}, -v{P16[jj]+1}, v{75+2*jj}, v78")
        a(f"v_fma_f32 v{Tm[jj]+1}, v{P16[jj]+1}, v{74+2*jj}, v79")
    lab = a.uid("L_nopub")
    a(f"s_cmp_lg_u32 s{S_W}, 3")
    a(f"s_cbranch_scc1 {lab}")
    a(f"s_cmp_eq_u32 s{S_MT}, 7")
    a(f"s_cbranch_scc1 {lab}")
    a(f"s_lshl_b32 s34, s{S_NT}, 3")
    a(f"s_add_u32 s34, s34, s{S_MT}")
    a("s_lshl_b32 s35, s34, 8")
    a(f"s_add_u32 s35, s35, {EXC_OFF}")
    a("s_lshl_b32 s34, s34, 2")
    a(f"s_add_u32 s34, s34, {FLAG_OFF}")
    a("v_cmp_lt_u32 vcc, 239, v0")
    a("s_and_saveexec_b64 s[36:37], vcc")
    a(f"buffer_store_dwordx4 v[68:71], v72, s[{S_WS}:{S_WS+3}], s35 offen sc1")
    a("s_waitcnt vmcnt(0)")
    a("v_cmp_eq_u32 vcc, 255, v0")
    a("s_and_b64 exec, exec, vcc")
    a("v_mov_b32 v78, 1")
    a("v_mov_b32 v79, 0")
    a(f"buffer_store_dword v78, v79, s[{S_WS}:{S_WS+3}], s34 offen sc1")
    a("s_mov_b64 exec, s[36:37]")
    a.label(lab)

def glu_epilogue(a, opt):
    a("v_and_b32 v81, 15, v0")
    a("v_lshlrev_b32 v81, 12, v81")
    a("v_bfe_u32 v82, v0, 4, 2")
    a("v_lshl_add_u32 v81, v82, 5, v81")
    a(f"s_mul_i32 s34, s{S_NT}, {112*4096}")
    a(f"s_lshl_b32 s35, s{S_MT}, 9")
    a("s_add_u32 s34, s34, s35")
    a(f"s_lshl_b32 s35, s{S_W}, 7")
    a("s_add_u32 s34, s34, s35")
    a(f"s_add_u32 s34, s34, {HT_OFF + 2048*4096}")
    a(f"s_mov_b32 s38, {f2u(-LOG2E)}"); a(f"s_mov_b32 s39, {f2u(-LOG2E)}")
    a(f"s_mov_b32 s40, {f2u(1.0)}"); a(f"s_mov_b32 s41, {f2u(1.0)}")
    for n in range(7):
        b = 84 + (n & 1)*40
        g, u, o = b, b+16, b+32
        for fm in range(4):
            ga = ((0*7+n)*4+fm)*4
            for r in range(4): a(f"v_accvgpr_read_b32 v{g+4*fm+r}, a{ga+r}")
            a(f"v_pk_mul_f32 v[{g+4*fm}:{g+4*fm+1}], v[{g+4*fm}:{g+4*fm+1}], s[38:39]") if False else None
        for i in range(0, 16, 2): a(f"v_pk_mul_f32 v[{g+i}:{g+i+1}], v[{g+i}:{g+i+1}], s[38:39]")
        for i in range(16): a(f"v_exp_f32 v{g+i}, v{g+i}")
        for fm in range(4):
            ua = ((7+n)*4+fm)*4
            for r in range(4): a(f"v_accvgpr_read_b32 v{u+4*fm+r}, a{ua+r}")
        for i in range(0, 16, 2): a(f"v_pk_add_f32 v[{g+i}:{g+i+1}], v[{g+i}:{g+i+1}], s[40:41]")
        for i in range(16): a(f"v_rcp_f32 v{g+i}, v{g+i}")
        a("s_nop 0")
        for i in range(0, 16, 2): a(f"v_pk_mul_f32 v[{g+i}:{g+i+1}], v[{g+i}:{g+i+1}], v[{u+i}:{u+i+1}]")
        for i in range(0, 16, 2): a(f"v_cvt_pk_bf16_f32 v{o+i//2}, v{g+i}, v{g+i+1}")
        if n > 0: a("s_add_u32 s34, s34, 65536")
        a(f"buffer_store_dwordx4 v[{o}:{o+3}], v81, s[{S_WS}:{S_WS+3}], s34 offen")
        a(f"buffer_store_dwordx4 v[{o+4}:{o+7}], v81, s[{S_WS}:{S_WS+3}], s34 offen offset:16")

def ssm_pass2(a):
    Tm = [68, 70]
    lab = a.uid("L_nocarry"); lp = a.uid("L_poll")
    for i in range(4): a(f"v_mov_b32 v{64+i}, 0")
    a(f"s_cmp_eq_u32 s{S_MT}, 0")
    a(f"s_cbranch_scc1 {lab}")
    a(f"s_lshl_b32 s34, s{S_NT}, 5")
    a(f"s_add_u32 s34, s34, {FLAG_OFF}")
    a("v_and_b32 v78, 7, v0")
    a("v_lshlrev_b32 v79, 2, v78")
    a("s_mov_b32 s42, 0x40000")
    a.label(lp)
    a(f"buffer_load_dword v80, v79, s[{S_WS}:{S_WS+3}], s34 offen sc1")
    a("s_waitcnt vmcnt(0)")
    a("v_cmp_ne_u32 vcc, 0, v80")
    a(f"v_cmp_le_u32 s[36:37], s{S_MT}, v78")
    a("s_or_b64 vcc, vcc, s[36:37]")
    a("s_sub_u32 s42, s42, 1")
    a("s_cmp_eq_u32 s42, 0")
    a("s_cbranch_scc1 L_k1_pollfail")
    a("s_cmp_eq_u64 vcc, -1")
    a(f"s_cbranch_scc0 {lp}")
    a.label("L_k1_pollfail")
    a(f"s_lshl_b32 s34, s{S_NT}, 11")
    a(f"s_add_u32 s34, s34, {EXC_OFF}")
    for j in range(7):
        a(f"buffer_load_dwordx4 v[{80+4*j}:{83+4*j}], v72, s[{S_WS}:{S_WS+3}], s34 offen offset:{256*j} sc1")
    a("s_waitcnt vmcnt(0)")
    for j in range(7):
        if j > 0:
            a(f"s_cmp_le_u32 s{S_MT}, {j}")
            a(f"s_cbranch_scc1 {lab}")
        e = 80 + 4*j
        for jj in range(2):
            a(f"v_fma_f32 v{Tm[jj]}, v{P256[jj]}, v{64+2*jj}, v{e+2*jj}")
            a(f"v_fma_f32 v{Tm[jj]+1}, v{P256[jj]}, v{65+2*jj}, v{e+2*jj+1}")
        for jj in range(2):
            a(f"v_fma_f32 v{Tm[jj]}, -v{P256[jj]+1}, v{65+2*jj}, v{Tm[jj]}")
            a(f"v_fma_f32 v{65+2*jj}, v{P256[jj]+1}, v{64+2*jj}, v{Tm[jj]+1}")
            a(f"v_mov_b32 v{64+2*jj}, v{Tm[jj]}")
    a.label(lab)
    for jj in range(2):
        a(f"v_fma_f32 v{74+2*jj}, v{PQ[jj]}, v{64+2*jj}, v{74+2*jj}")
        a(f"v_fma_f32 v{75+2*jj}, v{PQ[jj]}, v{65+2*jj}, v{75+2*jj}")
        a(f"v_fma_f32 v{74+2*jj}, -v{PQ[jj]+1}, v{65+2*jj}, v{74+2*jj}")
        a(f"v_fma_f32 v{75+2*jj}, v{PQ[jj]+1}, v{64+2*jj}, v{75+2*jj}")
    OP = lambda part, jj: 168 + (part*2 + jj)*8
    OT = 80
    for tau in range(16):
        for jj in range(2):
            a(f"v_fma_f32 v{Tm[jj]}, v{PA[jj]}, v{74+2*jj}, v{S(jj,tau)}")
            a(f"v_fma_f32 v{Tm[jj]+1}, v{PA[jj]}, v{75+2*jj}, v{S(2+jj,tau)}")
        for jj in range(2):
            a(f"v_fma_f32 v{Tm[jj]}, -v{PA[jj]+1}, v{75+2*jj}, v{Tm[jj]}")
            a(f"v_fma_f32 v{75+2*jj}, v{PA[jj]+1}, v{74+2*jj}, v{Tm[jj]+1}")
            a(f"v_mov_b32 v{74+2*jj}, v{Tm[jj]}")
        for jj in range(2):
            o = OT + jj*4 + (tau & 1)
            a(f"v_mul_f32 v{o}, v{PC[jj]}, v{74+2*jj}")
            a(f"v_mul_f32 v{o+2}, -v{PC[jj]}, v{75+2*jj}")
            a(f"v_fma_f32 v{o}, -v{PC[jj]+1}, v{75+2*jj}, v{o}")
            a(f"v_fma_f32 v{o+2}, -v{PC[jj]+1}, v{74+2*jj}, v{o+2}")
        if tau & 1:
            for jj in range(2):
                o = OT + jj*4
                a(f"v_cvt_pk_bf16_f32 v{OP(0,jj) + (tau>>1)}, v{o}, v{o+1}")
                a(f"v_cvt_pk_bf16_f32 v{OP(1,jj) + (tau>>1)}, v{o+2}, v{o+3}")
    a("v_and_b32 v88, 15, v0")
    a("v_lshlrev_b32 v88, 12, v88")
    a("v_bfe_u32 v89, v0, 4, 2")
    a("v_lshl_add_u32 v88, v89, 5, v88")
    a(f"s_lshl_b32 s34, s{S_NT}, 17")
    a(f"s_lshl_b32 s35, s{S_MT}, 9")
    a("s_add_u32 s34, s34, s35")
    a(f"s_lshl_b32 s35, s{S_W}, 7")
    a("s_add_u32 s34, s34, s35")
    a(f"s_add_u32 s34, s34, {HT_OFF}")
    for part in range(2):
        for jj in range(2):
            a(f"s_add_u32 s35, s34, {part*0x400000 + jj*65536}")
            o = OP(part, jj)
            a(f"buffer_store_dwordx4 v[{o}:{o+3}], v88, s[{S_WS}:{S_WS+3}], s35 offen")
            a(f"buffer_store_dwordx4 v[{o+4}:{o+7}], v88, s[{S_WS}:{S_WS+3}], s35 offen offset:16")

def k1_body(a, name, opt):
    kernel_begin(a, name)
    setup(a, name)
    param_loads(a)
    for s in range(4):
        for g in dma_group(None, s, opt):
            for l in g: a(l)
    for i in range(256): a(f"v_accvgpr_write_b32 a{i}, 0")
    for i in range(208, 240): a(f"v_mov_b32 v{i}, 0")
    a("s_waitcnt vmcnt(36)")
    param_compute(a)
    a("s_waitcnt vmcnt(27)")
    a("s_barrier")
    for r in frag_reads(0, 0): a(r)
    a(f"s_mov_b32 s{S_CNT}, 7")
    a.label("L_k1_loop")
    for s4 in range(4):
        step(a, s4, True, True, 18, opt)
    a(f"s_sub_u32 s{S_CNT}, s{S_CNT}, 1")
    a(f"s_cmp_lg_u32 s{S_CNT}, 0")
    a("s_cbranch_scc1 L_k1_loop")
    step(a, 0, False, True, 18, opt)
    step(a, 1, False, True, 9, opt)
    step(a, 2, False, True, 0, opt)
    step(a, 3, False, False, None, opt, barrier=False)
    a("s_nop 7"); a("s_nop 1")
    ssm_pass1(a)
    glu_epilogue(a, opt)
    ssm_pass2(a)
    a.label("L_k1_end")
    a("s_endpgm")

if __name__ == "__main__":
    a = Asm()
    name = "k1_kernel"
    a.raw(f"; @launch kernel={name} grid=(256,1,1) block=(256,1,1) lds=147456")
    a.raw('.amdgcn_target "amdgcn-amd-amdhsa--gfx950"')
    k1_body(a, name, {})
    a.raw(kernel_desc(name, 512, accum=256))
    open("k1.s", "w").write(a.text())
    build("k1.s", name)
    print("ok")
```

```python
import sys
sys.path.insert(0, "gen")
from asmlib import *
from k1 import XN_OFF, CT_OFF, HT_OFF

RING = 36864
BUF = 12288
NSTEP = 44
SET = [32, 80]
def rA(p, m): return SET[p] + 4*m
def rB(p, n): return SET[p] + 32 + 4*n
def acc(m, n):
    b = (m*4 + n)*4
    return f"a[{b}:{b+3}]"
V_AO = [1, 2, 3, 4]
V_BO = [5, 6, 7, 8]
V_RA = list(range(10, 18))
V_RB = list(range(18, 22))
S_H, S_Bc = 8, 12
S_CTL, S_CTH, S_WDL, S_WDH = 16, 17, 18, 19
S_SA, S_SA2, S_SB, S_K = 20, 21, 22, 23
S_M = 24
S_CNT = 25
S_W, S_MT, S_NT = 26, 27, 28

def dma_group(buf):
    g = []
    for i in range(8):
        l = []
        if i % 4 == 0:
            l.append(f"s_add_u32 m0, s{S_M}, {buf*BUF + (i//4)*4096}")
            if i == 0:
                l.append(f"s_cmp_lt_u32 s{S_K}, 2048")
            else:
                l.append("s_nop 0")
        so = S_SA if i < 4 else S_SA2
        l.append(f"buffer_load_dwordx4 v{V_AO[i%4]}, s[{S_H}:{S_H+3}], s{so} offen offset:{1024*(i%4)} lds")
        if i == 0:
            l.append(f"s_cselect_b32 s{S_Bc}, s{S_CTL}, s{S_WDL}")
            l.append(f"s_cselect_b32 s{S_Bc+1}, s{S_CTH}, s{S_WDH}")
        g.append(l)
    for i in range(4):
        l = []
        if i == 0:
            l.append(f"s_add_u32 m0, s{S_M}, {buf*BUF + 8192}")
            l.append("s_nop 0")
        l.append(f"buffer_load_dwordx4 v{V_BO[i]}, s[{S_Bc}:{S_Bc+3}], s{S_SB} offen offset:{1024*i} lds")
        if i == 3:
            l.append(f"s_add_u32 s{S_SA}, s{S_SA}, {32*4096}")
            l.append(f"s_add_u32 s{S_SA2}, s{S_SA2}, {32*4096}")
            l.append(f"s_add_u32 s{S_SB}, s{S_SB}, {32*2048}")
            l.append(f"s_add_u32 s{S_K}, s{S_K}, 32")
        g.append(l)
    return g

def frag_reads(p, buf):
    r = []
    for n in range(4):
        for h in range(2):
            b = rB(p, n) + 2*h
            r.append(f"ds_read_b64_tr_b16 v[{b}:{b+1}], v{V_RB[n]} offset:{buf*BUF + h*512}")
    for m in range(8):
        for h in range(2):
            b = rA(p, m) + 2*h
            r.append(f"ds_read_b64_tr_b16 v[{b}:{b+1}], v{V_RA[m]} offset:{buf*BUF + h*1024}")
    return r

def mfmas(p):
    m_ = []
    for m in range(8):
        for n in range(4):
            d = acc(m, n)
            m_.append(f"v_mfma_f32_16x16x32_bf16 {d}, v[{rB(p,n)}:{rB(p,n)+3}], v[{rA(p,m)}:{rA(p,m)+3}], {d}")
    return m_

def step(a, s, dma, reads, vm, opt):
    p = s & 1
    w = []
    if vm is not None: w.append(f"vmcnt({vm})")
    w.append("lgkmcnt(0)")
    a("s_waitcnt " + " ".join(w))
    M = mfmas(p)
    fill = [[] for _ in M]
    if dma:
        G = dma_group(s % 3)
        d0 = opt.get("dma0", 0); dsp = opt.get("dsp", 2)
        for i, g in enumerate(G): fill[d0 + i*dsp].extend(g)
    if reads:
        R = frag_reads(1-p, (s+1) % 3)
        span = opt.get("rspan", 26)
        for i, r in enumerate(R): fill[(i*span)//len(R)].append(r)
    for i, m in enumerate(M):
        a(m)
        for f in fill[i]: a(f)

def k2_body(a, name, opt):
    kernel_begin(a, name)
    a("s_cmp_ge_u32 s2, 256")
    a("s_cbranch_scc1 L_k2_end")
    a("s_load_dwordx2 s[40:41], s[0:1], 96")
    a("s_load_dwordx4 s[44:47], s[0:1], 104")
    a("s_load_dwordx2 s[48:49], s[0:1], 120")
    a("s_load_dwordx2 s[50:51], s[0:1], 0")
    a("s_load_dwordx2 s[52:53], s[0:1], 64")
    a("v_lshrrev_b32 v22, 6, v0")
    a("v_and_b32 v23, 63, v0")
    a("s_and_b32 s34, s2, 7")
    a("s_lshr_b32 s35, s2, 3")
    a(f"v_readfirstlane_b32 s{S_W}, v22")
    a("s_lshr_b32 s36, s34, 1")
    a("s_lshl_b32 s36, s36, 2")
    a("s_and_b32 s37, s35, 3")
    a(f"s_add_u32 s{S_MT}, s36, s37")
    a("s_and_b32 s36, s34, 1")
    a("s_lshl_b32 s36, s36, 3")
    a("s_lshr_b32 s37, s35, 2")
    a(f"s_add_u32 s{S_NT}, s36, s37")
    a("v_lshrrev_b32 v24, 4, v23")
    a("v_bfe_u32 v25, v23, 1, 3")
    a("v_and_b32 v26, 1, v23")
    a("v_lshlrev_b32 v26, 4, v26")
    a("v_lshl_add_u32 v26, v24, 12, v26")
    a(f"s_lshl_b32 s36, s{S_MT}, 8")
    a(f"s_add_u32 s36, s36, {HT_OFF}")
    a("v_add_u32 v26, s36, v26")
    for i in range(4):
        b = (i >> 1) & 1
        a(f"v_add_u32 v27, {4*b}, v24")
        a("v_xor_b32 v27, v27, v25")
        a("v_lshl_add_u32 v27, v27, 5, v26")
        a(f"v_add_u32 v{V_AO[i]}, {i*16384 - 1024*i}, v27")
    a("v_lshrrev_b32 v24, 3, v23")
    a("v_bfe_u32 v25, v23, 1, 2")
    a("v_and_b32 v26, 1, v23")
    a("v_lshlrev_b32 v26, 4, v26")
    a("v_lshl_add_u32 v26, v24, 11, v26")
    a(f"s_lshl_b32 s36, s{S_NT}, 7")
    a("v_add_u32 v26, s36, v26")
    a("v_bfe_u32 v28, v23, 4, 1")
    for i in range(4):
        a(f"v_add_u32 v27, {2*(i&1)}, v28")
        a("v_xor_b32 v27, v27, v25")
        a("v_lshl_add_u32 v27, v27, 5, v26")
        a(f"v_add_u32 v{V_BO[i]}, {i*8*2048 - 1024*i}, v27")
    a(f"s_mul_i32 s{S_M}, s{S_W}, {RING}")
    a("v_lshrrev_b32 v24, 4, v23")
    a("v_bfe_u32 v25, v23, 2, 2")
    a("v_and_b32 v26, 3, v23")
    a("v_lshl_add_u32 v27, v24, 3, v25")
    a("v_and_b32 v28, 1, v24")
    a("v_lshl_add_u32 v29, v28, 2, v25")
    a("v_lshlrev_b32 v30, 8, v27")
    a("v_lshl_add_u32 v30, v26, 3, v30")
    a(f"v_add_u32 v30, s{S_M}, v30")
    for m in range(8):
        a(f"v_xor_b32 v31, {m}, v29")
        a(f"v_lshl_add_u32 v{V_RA[m]}, v31, 5, v30")
    a("v_lshrrev_b32 v29, 1, v25")
    a("v_lshl_add_u32 v29, v28, 1, v29")
    a("v_lshlrev_b32 v30, 7, v27")
    a("v_lshl_add_u32 v30, v26, 3, v30")
    a(f"v_add_u32 v30, s{S_M}, v30")
    a("v_add_u32 v30, 8192, v30")
    for n in range(4):
        a(f"v_xor_b32 v31, {n}, v29")
        a(f"v_lshl_add_u32 v{V_RB[n]}, v31, 5, v30")
    a(f"s_mul_i32 s{S_K}, s{S_W}, 1408")
    a(f"s_lshl_b32 s{S_SA}, s{S_K}, 12")
    a(f"s_add_u32 s{S_SA2}, s{S_SA}, 65536")
    a(f"s_lshl_b32 s{S_SB}, s{S_K}, 11")
    a("s_waitcnt lgkmcnt(0)")
    a(f"s_mov_b32 s{S_H}, s48"); a(f"s_and_b32 s{S_H+1}, s49, 0xffff"); a(f"s_mov_b32 s{S_H+2}, 0x10000000"); a(f"s_mov_b32 s{S_H+3}, 0x20000")
    a(f"s_add_u32 s{S_CTL}, s48, {CT_OFF}"); a(f"s_addc_u32 s{S_CTH}, s49, 0"); a(f"s_and_b32 s{S_CTH}, s{S_CTH}, 0xffff")
    a(f"s_sub_u32 s{S_WDL}, s40, {2048*2048}"); a(f"s_subb_u32 s{S_WDH}, s41, 0"); a(f"s_and_b32 s{S_WDH}, s{S_WDH}, 0xffff")
    a(f"s_mov_b32 s{S_Bc}, s{S_CTL}"); a(f"s_mov_b32 s{S_Bc+1}, s{S_CTH}")
    a(f"s_mov_b32 s{S_Bc+2}, {5632*2048}"); a(f"s_mov_b32 s{S_Bc+3}, 0x20000")
    for s in range(3):
        for g in dma_group(s):
            for l in g: a(l)
    for i in range(128): a(f"v_accvgpr_write_b32 a{i}, 0")
    a("s_waitcnt vmcnt(24)")
    for r in frag_reads(0, 0): a(r)
    if opt.get("timing"):
        a("s_memtime s[60:61]"); a("s_memrealtime s[64:65]")
    a(f"s_mov_b32 s{S_CNT}, 6")
    a.label("L_k2_loop")
    for s in range(6): step(a, s, True, True, 12, opt)
    a(f"s_sub_u32 s{S_CNT}, s{S_CNT}, 1")
    a(f"s_cmp_lg_u32 s{S_CNT}, 0")
    a("s_cbranch_scc1 L_k2_loop")
    for s in range(36, 44):
        dma = s + 3 < NSTEP
        reads = s + 1 < NSTEP
        if s + 2 < NSTEP: vm = 12
        elif s + 1 < NSTEP: vm = 0
        else: vm = None
        step(a, s, dma, reads, vm, opt)
    if opt.get("timing"):
        a("s_memtime s[62:63]"); a("s_memrealtime s[66:67]")
    a("s_nop 7"); a("s_nop 1")
    a("v_and_b32 v24, 15, v23")
    a("v_lshrrev_b32 v25, 4, v23")
    a("v_lshlrev_b32 v26, 8, v24")
    a(f"v_add_u32 v26, s{S_M}, v26")
    for n in range(4):
        a(f"v_add_u32 v27, {4*n}, v25")
        a("v_xor_b32 v27, v27, v24")
        a(f"v_lshl_add_u32 v{10+n}, v27, 4, v26")
    for m in range(8):
        for n in range(4):
            b = (m*4+n)*4
            t = 32 + ((m*4+n) % 8)*4
            for r in range(4): a(f"v_accvgpr_read_b32 v{t+r}, a{b+r}")
            a(f"ds_write_b128 v{10+n}, v[{t}:{t+3}] offset:{m*4096}")
    a("v_lshlrev_b32 v26, 11, v25")
    a("v_lshl_add_u32 v26, v24, 3, v26")
    a(f"s_lshl_b32 s34, s{S_MT}, 7")
    a(f"s_lshl_b32 s35, s{S_W}, 5")
    a("s_add_u32 s34, s34, s35")
    a("s_lshl_b32 s35, s34, 11")
    a(f"s_lshl_b32 s36, s{S_NT}, 7")
    a("s_add_u32 s35, s35, s36")
    a("v_add_u32 v26, s35, v26")
    for i in range(8):
        a(f"global_load_dwordx2 v[{64+2*i}:{65+2*i}], v26, s[50:51]")
        a("v_add_u32 v26, 8192, v26")
    a("v_lshrrev_b32 v27, 2, v24")
    a("v_lshlrev_b32 v27, 16, v27")
    a("v_and_b32 v28, 3, v24")
    a("v_lshl_add_u32 v27, v28, 3, v27")
    a("v_lshl_add_u32 v27, v25, 5, v27")
    a(f"s_lshl_b32 s35, s{S_NT}, 18")
    a("s_lshl_b32 s36, s34, 5")
    a("s_add_u32 s35, s35, s36")
    a(f"s_add_u32 s35, s35, {XN_OFF}")
    for i in range(8):
        a(f"buffer_load_dwordx2 v[{80+2*i}:{81+2*i}], v27, s[{S_H}:{S_H+3}], s35 offen offset:{i*128}")
    a("v_lshlrev_b32 v28, 3, v24")
    a(f"s_lshl_b32 s36, s{S_NT}, 7")
    a("v_add_u32 v28, s36, v28")
    a("global_load_dwordx2 v[96:97], v28, s[52:53]")
    a("s_waitcnt lgkmcnt(0)")
    a("s_barrier")
    a(f"s_lshl_b32 s36, s{S_W}, 13")
    a("v_lshlrev_b32 v29, 8, v25")
    a("v_add_u32 v29, s36, v29")
    for i4 in range(4):
        a(f"v_add_u32 v30, {4*i4}, v25")
        a("v_xor_b32 v30, v30, v24")
        a(f"v_lshl_add_u32 v{10+i4}, v30, 4, v29")
    a(f"v_add_u32 v14, {2*RING}, v10"); a(f"v_add_u32 v15, {2*RING}, v11"); a(f"v_add_u32 v16, {2*RING}, v12"); a(f"v_add_u32 v17, {2*RING}, v13")
    a("v_lshlrev_b32 v31, 12, v25")
    a("v_lshl_add_u32 v31, v24, 4, v31")
    a("s_lshl_b32 s35, s34, 12")
    a(f"s_lshl_b32 s36, s{S_NT}, 8")
    a("s_add_u32 s35, s35, s36")
    a("v_add_u32 v31, s35, v31")
    a("s_waitcnt vmcnt(0)")
    a("v_lshlrev_b32 v98, 16, v96"); a("v_and_b32 v99, 0xffff0000, v96")
    a("v_lshlrev_b32 v100, 16, v97"); a("v_and_b32 v101, 0xffff0000, v97")
    for i in range(8):
        b = 104 + (i % 2)*16
        off = i*1024
        a(f"ds_read_b128 v[{b}:{b+3}], v{10+i%4} offset:{off}")
        a(f"ds_read_b128 v[{b+4}:{b+7}], v{10+i%4} offset:{off+RING}")
        a(f"ds_read_b128 v[{b+8}:{b+11}], v{14+i%4} offset:{off}")
        a(f"ds_read_b128 v[{b+12}:{b+15}], v{14+i%4} offset:{off+RING}")
        xa, xb = 80+2*i, 81+2*i
        a(f"v_lshlrev_b32 v40, 16, v{xa}"); a(f"v_and_b32 v41, 0xffff0000, v{xa}")
        a(f"v_lshlrev_b32 v42, 16, v{xb}"); a(f"v_and_b32 v43, 0xffff0000, v{xb}")
        for r in range(4): a(f"v_mul_f32 v{40+r}, v{40+r}, v{98+r}")
        a("v_cvt_pk_bf16_f32 v44, v40, v41"); a("v_cvt_pk_bf16_f32 v45, v42, v43")
        a("v_lshlrev_b32 v40, 16, v44"); a("v_and_b32 v41, 0xffff0000, v44")
        a("v_lshlrev_b32 v42, 16, v45"); a("v_and_b32 v43, 0xffff0000, v45")
        xa, xb = 64+2*i, 65+2*i
        a(f"v_lshlrev_b32 v46, 16, v{xa}"); a(f"v_and_b32 v47, 0xffff0000, v{xa}")
        a(f"v_lshlrev_b32 v48, 16, v{xb}"); a(f"v_and_b32 v49, 0xffff0000, v{xb}")
        for r in range(4): a(f"v_add_f32 v{40+r}, v{40+r}, v{46+r}")
        a("s_waitcnt lgkmcnt(0)")
        for r in range(4): a(f"v_add_f32 v{b+r}, v{b+r}, v{b+4+r}")
        for r in range(4): a(f"v_add_f32 v{b+8+r}, v{b+8+r}, v{b+12+r}")
        for r in range(4): a(f"v_add_f32 v{b+r}, v{b+r}, v{b+8+r}")
        for r in range(4): a(f"v_add_f32 v{b+r}, v{b+r}, v{40+r}")
        a(f"global_store_dwordx4 v31, v[{b}:{b+3}], s[44:45]")
        a("v_add_u32 v31, 16384, v31")
    if opt.get("timing"):
        a("s_waitcnt lgkmcnt(0)")
        a("s_sub_u32 s62, s62, s60"); a("s_sub_u32 s66, s66, s64")
        a("v_mov_b32 v2, s62"); a("v_mov_b32 v3, s66")
        a("s_lshl_b32 s34, s2, 3"); a("v_mov_b32 v4, s34")
        a("v_cmp_eq_u32 vcc, 0, v0"); a("s_and_saveexec_b64 s[54:55], vcc"); a("s_cbranch_execz L_k2_end")
        a(f"s_add_u32 s48, s48, {0x04000000}"); a("s_addc_u32 s49, s49, 0")
        a("global_store_dwordx2 v4, v[2:3], s[48:49]")
    a.label("L_k2_end")
    a("s_endpgm")

if __name__ == "__main__":
    for nm, opt in (("k2", {}), ("k2t", dict(timing=True))):
        a = Asm()
        name = nm + "_kernel"
        a.raw(f"; @launch kernel={name} grid=(256,1,1) block=(256,1,1) lds=147456")
        a.raw('.amdgcn_target "amdgcn-amd-amdhsa--gfx950"')
        k2_body(a, name, opt)
        a.raw(kernel_desc(name, 256, accum=128))
        open(f"bench/{nm}.s", "w").write(a.text())
        build(f"bench/{nm}.s", name)
    print("ok")
```

```python
import sys
sys.path.insert(0, "gen")
from asmlib import *
import k0, k1, k1e, k2

MAIN = "parallel_sum__ssm_conv_s5__glu_gated_glu__prompt_kernel"
HDR = """; Kernarg layout (128 bytes, ptrs only, base s[0:1]):
"""

def gen(opt1=None, opt2=None, opt0=None):
    opt1 = opt1 or {}; opt2 = opt2 or {}
    a = Asm()
    for l in HDR.strip().split("\n"): a.raw(l)
    a.raw("; @launch kernel=s5_k0_kernel grid=(640,1,1) block=(256,1,1) lds=32768")
    a.raw("; @launch kernel=s5_k1_kernel grid=(256,1,1) block=(256,1,1) lds=147456")
    a.raw(f"; @launch kernel={MAIN} grid=(256,1,1) block=(256,1,1) lds=147456")
    a.raw('.amdgcn_target "amdgcn-amd-amdhsa--gfx950"')
    k0.k0_body(a, "s5_k0_kernel")
    k1e.k1_body(a, "s5_k1_kernel", opt1)
    k2.k2_body(a, MAIN, opt2)
    a.raw(kernel_desc("s5_k0_kernel", 64, accum=64))
    a.raw(kernel_desc("s5_k1_kernel", 512, accum=256))
    a.raw(kernel_desc(MAIN, 256, accum=128))
    return a.text()

if __name__ == "__main__":
    out = sys.argv[1] if len(sys.argv) > 1 else "full.s"
    open(out, "w").write(gen())
    build(out, MAIN)
    print("ok", out)
```
